```python
import torch

def _softmax(x, axis=-1):
    return torch.softmax(x, dim=axis)
def _gelu(x):
    return torch.nn.functional.gelu(x, approximate="tanh")
def _silu(x):
    return torch.nn.functional.silu(x)
def _sigmoid(x):
    return torch.sigmoid(x)
def _layernorm(x, axis=-1, eps=1e-5):
    m = x.mean(dim=axis, keepdim=True)
    v = x.var(dim=axis, keepdim=True, unbiased=False)
    return (x - m) / torch.sqrt(v + eps)
def _scatter_add(tgt, idx, src, axis=0):
    return tgt.clone().index_add_(axis, idx, src)
def _segment_sum(src, seg, n):
    out = torch.zeros((n,) + src.shape[1:], dtype=src.dtype)
    return out.index_add_(0, seg, src)
def _pad(x, pw):
    flat = tuple(v for pair in reversed(pw) for v in pair)
    return torch.nn.functional.pad(x, flat)

kernel_name = 'sequential_preLN__softmax_full_mha__geglu_ffn__prompt'

def setup_inputs():

    _w = (lambda a: (lambda t: t.to(torch.bfloat16) if t.is_floating_point() else t)(torch.as_tensor(a)))
    def _A_setup():
        B, S, D = 1, 2048, 640
        return {
            "x": _w((lambda *s: torch.randn(*s, dtype=torch.bfloat16) * 0.05)(B, S, D)),
            "wqkv": _w((lambda *s: torch.randn(*s, dtype=torch.bfloat16) * 0.05)(D, 3 * D)),
            "wo": _w((lambda *s: torch.randn(*s, dtype=torch.bfloat16) * 0.05)(D, D)),
        }
    _A_in = _A_setup()

    def _B_setup():
        B, S, D, F = 1, 2048, 640, 1536
        return {
            "x": _w((lambda *s: torch.randn(*s, dtype=torch.bfloat16) * 0.05)(B, S, D)),
            "w_gate": _w((lambda *s: torch.randn(*s, dtype=torch.bfloat16) * 0.05)(D, F)),
            "w_up": _w((lambda *s: torch.randn(*s, dtype=torch.bfloat16) * 0.05)(D, F)),
            "w_down": _w((lambda *s: torch.randn(*s, dtype=torch.bfloat16) * 0.05)(F, D)),
        }
    _B_in = _B_setup()

    return {
        "A_x": _A_in["x"],
        "A_wqkv": _A_in["wqkv"],
        "A_wo": _A_in["wo"],
        "B_x": _B_in["x"],
        "B_w_gate": _B_in["w_gate"],
        "B_w_up": _B_in["w_up"],
        "B_w_down": _B_in["w_down"],
    }

def reference(A_x, A_wqkv, A_wo, B_x, B_w_gate, B_w_up, B_w_down):
    def _A_ref(x, wqkv, wo):
        B, S, D = x.shape
        H = 32; Dh = D // H
        qkv = (lambda x, *d: x.permute(*d))((x @ wqkv).reshape(B, S, 3, H, Dh), 2, 0, 3, 1, 4)
        q, k, v = qkv[0], qkv[1], qkv[2]
        scale = Dh ** -0.5
        scores = torch.einsum("bhqd,bhkd->bhqk", q, k) * scale
        p = _softmax(scores, axis=-1)
        o = torch.einsum("bhqk,bhkd->bhqd", p, v)
        return (lambda x, *d: x.permute(*d))(o, 0, 2, 1, 3).reshape(B, S, D) @ wo

    def _B_ref(x, w_gate, w_up, w_down):
        return (_gelu(x @ w_gate) * (x @ w_up)) @ w_down

    x = A_x
    h = x + _A_ref(_layernorm(x, axis=-1), A_wqkv, A_wo)
    h2 = h + _B_ref(_layernorm(h, axis=-1), B_w_gate, B_w_up, B_w_down)
    return h2
```

```python
import layout as L

class A:
    def __init__(self):
        self.lines = []
    def __call__(self, s):
        for ln in s.strip("\n").split("\n"):
            ln = ln.strip()
            if not ln:
                continue
            if ln.endswith(":") or ln.startswith("."):
                self.lines.append(ln)
            else:
                self.lines.append("    " + ln)
    def c(self, s):
        self.lines.append("    ; " + s)
    def text(self):
        return "\n".join(self.lines) + "\n"

def vr(b, n=1):
    return f"v{b}" if n == 1 else f"v[{b}:{b+n-1}]"
def ar(b, n=1):
    return f"a{b}" if n == 1 else f"a[{b}:{b+n-1}]"
def sr(b, n=1):
    return f"s{b}" if n == 1 else f"s[{b}:{b+n-1}]"

def srd(a, d, p, size):
    a(f"""
    s_mov_b32 s{d}, s{p}
    s_and_b32 s{d+1}, s{p+1}, 0xffff
    s_mov_b32 s{d+2}, {size}
    s_mov_b32 s{d+3}, 0x00020000
    """)

def kernel_begin(a, name):
    a.lines.append(f".globl {name}")
    a.lines.append(".p2align 8")
    a.lines.append(f".type {name},@function")
    a.lines.append(f"{name}:")

def kd(name, nvgpr, accoff, nsgpr=96):
    return f""".amdhsa_kernel {name}
  .amdhsa_next_free_vgpr {nvgpr}
  .amdhsa_next_free_sgpr {nsgpr}
  .amdhsa_accum_offset {accoff}
  .amdhsa_group_segment_fixed_size 0
  .amdhsa_kernarg_size 80
  .amdhsa_user_sgpr_count 2
  .amdhsa_user_sgpr_kernarg_segment_ptr 1
  .amdhsa_system_sgpr_workgroup_id_x 1
.end_amdhsa_kernel
"""

def f2u(x):
    import struct
    return "0x%08x" % struct.unpack("<I", struct.pack("<f", x))[0]

def halfsum(a, x, t):
    a(f"""
    v_mov_b32 v{t}, v{x}
    s_nop 1
    v_permlane32_swap_b32 v{x}, v{t}
    s_nop 1
    v_add_f32 v{x}, v{x}, v{t}
    """)

import os
PROFILE = int(os.environ.get("PROFILE", "0"))
PROF = 0x1A00000
def stamp(a, idx):
    if PROFILE:
        a(f"s_memtime s[{64+2*idx}:{65+2*idx}]")
def stamp_real(a, idx):
    if PROFILE:
        a(f"s_memrealtime s[{64+2*idx}:{65+2*idx}]")
def prof_store(a, kidx, n, wave_s, wsptr=8, nwaves=4):
    if not PROFILE:
        return
    a(f"""
    s_waitcnt lgkmcnt(0)
    s_mov_b32 s88, s{wsptr}
    s_and_b32 s89, s{wsptr+1}, 0xffff
    s_mov_b32 s90, 0x10000000
    s_mov_b32 s91, 0x00020000
    s_lshl_b32 s92, s2, 3
    s_add_u32 s92, s92, s{wave_s}
    s_lshl_b32 s92, s92, 6
    s_add_u32 s92, s92, {PROF + kidx*0x40000}
    v_mov_b32 v1, 0
    """)
    for i in range(n):
        a(f"""
        v_mov_b32 v2, s{64+2*i}
        buffer_store_dword v2, v1, s[88:91], s92 offen offset:{4*i}
        """)
    a("s_waitcnt vmcnt(0)")
```

```python
from asmlib import *

def gen_k1(a):
    N = "qkv_kernel"
    kernel_begin(a, N)
    a(f"""
    s_cmp_ge_u32 s2, 256
    s_cbranch_scc1 K1_end
    s_load_dwordx4 s[4:7], s[0:1], 0
    s_load_dwordx2 s[8:9], s[0:1], 72
    s_load_dwordx4 s[12:15], s[0:1], 32
    v_lshrrev_b32 v1, 6, v0
    v_and_b32 v0, 63, v0
    s_and_b32 s3, s2, 7
    v_readfirstlane_b32 s28, v1
    s_lshr_b32 s10, s2, 3
    s_lshr_b32 s29, s3, 1
    s_lshl_b32 s29, s29, 2
    s_and_b32 s11, s10, 3
    s_add_u32 s29, s29, s11
    s_and_b32 s30, s3, 1
    s_lshl_b32 s30, s30, 3
    s_lshr_b32 s11, s10, 2
    s_add_u32 s30, s30, s11
    s_mov_b32 s36, 0x3f803f80
    s_waitcnt lgkmcnt(0)
    """)
    stamp_real(a, 0); stamp(a, 1)
    srd(a, 16, 4, 2621440)
    srd(a, 20, 6, 2457600)
    srd(a, 24, 8, L.WS_USED)
    a(f"""
    s_cmp_eq_u32 s30, 15
    s_cbranch_scc1 K1_spare
    """)
    a(f"""
    s_cmp_lt_u32 s28, 4
    s_cbranch_scc1 K1_comp
    s_sub_u32 s28, s28, 4
    """)
    a.c("---- loader waves: DMA voffsets x v8..v11, W v12..v15")
    a(f"""
    v_lshrrev_b32 v1, 3, v0
    s_lshl_b32 s10, s28, 5
    v_add_u32 v1, s10, v1
    v_mul_u32_u24 v1, 1280, v1
    v_and_b32 v2, 7, v0
    v_lshrrev_b32 v3, 4, v0
    v_xor_b32 v2, v2, v3
    v_lshl_add_u32 v8, v2, 4, v1
    v_xor_b32 v9, 64, v8
    v_add_u32 v9, 10240, v9
    v_add_u32 v10, 20480, v8
    v_add_u32 v11, 20480, v9
    s_lshl_b32 s10, s28, 4
    v_add_u32 v1, s10, v3
    v_mul_u32_u24 v1, 3840, v1
    v_and_b32 v2, 15, v0
    v_lshlrev_b32 v4, 2, v3
    v_xor_b32 v2, v2, v4
    v_lshl_add_u32 v12, v2, 4, v1
    v_add_u32 v13, 15360, v12
    v_add_u32 v14, 30720, v12
    v_add_u32 v15, 46080, v12
    s_mul_i32 s42, s29, 163840
    s_lshl_b32 s43, s30, 8
    s_lshl_b32 s33, s28, 12
    """)
    a.c("K rotation: r = ((5*ntl + 10*mtl) >> 2) mod 10")
    a(f"""
    s_and_b32 s10, s30, 7
    s_and_b32 s11, s29, 3
    s_lshl_b32 s11, s11, 1
    s_add_u32 s10, s10, s11
    s_mul_i32 s10, s10, 5
    s_lshr_b32 s44, s10, 2
    s_cmp_ge_u32 s44, 10
    s_cselect_b32 s10, 10, 0
    s_sub_u32 s44, s44, s10
    """)
    if os.environ.get("NOROT"): a("s_mov_b32 s44, 0")
    def dma_stage(slot):
        if os.environ.get("NODMA"): return
        a(f"""
        s_lshl_b32 s31, s44, 7
        s_add_u32 s31, s31, s42
        s_mul_i32 s32, s44, 245760
        s_add_u32 s32, s32, s43
        """)
        for i in range(4):
            a(f"""
            s_add_u32 m0, s33, {slot*32768+i*1024}
            s_nop 0
            buffer_load_dwordx4 v{8+i}, s[16:19], s31 offen lds
            s_add_u32 m0, s33, {slot*32768+16384+i*1024}
            s_nop 0
            buffer_load_dwordx4 v{12+i}, s[20:23], s32 offen lds
            """)
        a(f"""
        s_add_u32 s44, s44, 1
        s_cmp_eq_u32 s44, 10
        s_cselect_b32 s44, 0, s44
        """)
    for t in range(3):
        dma_stage(t)
    for st in range(10):
        a(f"s_waitcnt vmcnt({8*min(2, 9-st)})")
        a("s_barrier")
        if st+3 < 10:
            dma_stage((st+3) % 4)
    if PROFILE:
        a("s_add_u32 s28, s28, 4")
        stamp(a, 2); stamp(a, 3); stamp(a, 4)
        a("s_branch K1_fin")
    a("s_endpgm")
    a("K1_comp:")
    a.c("LDS read addresses: x v16..19 (per ks), W v20..23 (per slot c)")
    a(f"""
    v_and_b32 v1, 31, v0
    s_lshl_b32 s10, s28, 5
    v_add_u32 v2, s10, v1
    v_lshlrev_b32 v2, 7, v2
    v_lshrrev_b32 v3, 1, v1
    v_and_b32 v3, 7, v3
    v_lshrrev_b32 v4, 5, v0
    v_xor_b32 v3, v3, v4
    v_lshl_add_u32 v16, v3, 4, v2
    v_xor_b32 v17, 32, v16
    v_xor_b32 v18, 64, v16
    v_xor_b32 v19, 96, v16
    v_and_b32 v1, 15, v0
    v_lshrrev_b32 v2, 2, v1
    v_lshl_add_u32 v3, v4, 3, v2
    v_lshlrev_b32 v3, 8, v3
    v_add_u32 v3, 16384, v3
    v_lshrrev_b32 v5, 4, v0
    v_and_b32 v5, 1, v5
    v_lshl_add_u32 v3, v5, 5, v3
    v_and_b32 v5, 3, v1
    v_lshl_add_u32 v3, v5, 3, v3
    """)
    for c in range(4):
        a(f"""
        s_add_u32 s10, s28, {c}
        s_and_b32 s10, s10, 3
        v_xor_b32 v5, s10, v2
        v_lshl_add_u32 v{20+c}, v5, 6, v3
        """)
    for r in range(24, 30):
        a(f"v_mov_b32 v{r}, 0")
    ACC = 72
    for r in range(ACC, ACC+64):
        a(f"v_mov_b32 v{r}, 0")
    XB = 168
    W0 = 184
    WB = [32, 44]
    def xf(ks): return XB+4*ks
    def wf(ks, c): return W0+4*ks if c == 0 else WB[ks & 1]+4*(c-1)
    def reads(ks):
        out = [f"ds_read_b128 {vr(xf(ks),4)}, v{16+ks}"]
        for c in range(4):
            for j in range(2):
                out.append(f"ds_read_b64_tr_b16 {vr(wf(ks,c)+2*j,2)}, v{20+c} offset:{(16*ks+4*j)*256}")
        return out
    def dots(ks):
        if os.environ.get("NODOTS"): return
        for i in range(4):
            a(f"v_dot2c_f32_bf16 v{24+(i&1)}, s36, v{xf(ks)+i}")
            a(f"v_dot2c_f32_bf16 v{26+(i&1)}, v{xf(ks)+i}, v{xf(ks)+i}")
            a(f"v_dot2c_f32_bf16 v{28+(i&1)}, s36, v{wf(ks,0)+i}")
    def phase(ks, rd, vpath, pre_waits):
        if os.environ.get("NOCOMP"): return
        groups = [rd[0:3], rd[3:5], rd[5:7], rd[7:9]]
        issued = 0
        for c in range(4):
            if pre_waits:
                a(f"s_waitcnt lgkmcnt({6-2*c+issued})")
            acc = vr(ACC+16*c, 16)
            if vpath:
                a(f"v_mfma_f32_32x32x16_bf16 {acc}, {vr(xf(ks),4)}, {vr(wf(ks,c),4)}, {acc}")
            else:
                a(f"v_mfma_f32_32x32x16_bf16 {acc}, {vr(wf(ks,c),4)}, {vr(xf(ks),4)}, {acc}")
            for x in groups[c]:
                a(x)
            issued += len(groups[c])
    stamp(a, 2)
    a("s_barrier")
    stamp(a, 3)
    if PROFILE: a("s_waitcnt lgkmcnt(0)")
    for x in reads(0):
        a(x)
    a(f"""
    s_mov_b32 s34, 0
    s_mov_b32 s41, 0x8000
    s_cmp_ge_u32 s30, 10
    s_cbranch_scc1 K1_loopV
    """)
    for vpath in (False, True):
        P = "V" if vpath else "Q"
        a(f"K1_loop{P}:")
        phase(0, reads(1), vpath, True)
        phase(1, reads(2), vpath, True)
        phase(2, reads(3), vpath, True)
        a(f"""
        s_add_u32 s34, s34, 1
        s_and_b32 s37, s34, 3
        s_cselect_b32 s35, s41, 0xfffe8000
        """)
        for r in range(16, 24):
            a(f"v_add_u32 v{r}, s35, v{r}")
        dots(0)
        a(f"""
        s_waitcnt lgkmcnt(0)
        s_barrier
        """)
        for x in reads(0):
            a(x)
        dots(1); dots(2); dots(3)
        phase(3, [""]*9, vpath, False)
        a(f"""
        s_cmp_lt_u32 s34, 10
        s_cbranch_scc1 K1_loop{P}
        """)
        if not vpath:
            a("s_branch K1_epi")
    a("K1_epi:")
    stamp(a, 4)
    a.c("stats")
    a(f"""
    s_waitcnt lgkmcnt(0)
    s_nop 2
    v_add_f32 v24, v24, v25
    v_add_f32 v26, v26, v27
    v_add_f32 v28, v28, v29
    """)
    halfsum(a, 24, 1); halfsum(a, 26, 1); halfsum(a, 28, 1)
    a(f"""
    v_mul_f32 v24, {f2u(1/640)}, v24
    v_mul_f32 v26, {f2u(1/640)}, v26
    v_fma_f32 v26, -v24, v24, v26
    v_max_f32 v26, 0, v26
    v_add_f32 v26, {f2u(1e-5)}, v26
    v_rsq_f32 v26, v26
    v_sub_f32 v24, 0, v24
    v_and_b32 v1, 31, v0
    v_lshlrev_b32 v2, 2, v1
    v_add_u32 v2, 0x20000, v2
    s_lshl_b32 s10, s28, 7
    v_add_u32 v3, s10, v2
    ds_write_b32 v3, v28
    s_lshl_b32 s11, s28, 8
    v_add_u32 v3, s11, v2
    ds_write_b32 v3, v24 offset:512
    ds_write_b32 v3, v26 offset:640
    v_lshrrev_b32 v4, 5, v0
    s_lshl_b32 s38, s29, 2
    s_add_u32 s38, s38, s28
    s_waitcnt lgkmcnt(0)
    s_barrier
    s_cmp_ge_u32 s30, 10
    s_cbranch_scc1 K1_epiV
    """)
    a.c("Q/K epilogue")
    qs = (20 ** -0.5) * 1.4426950408889634
    a(f"""
    s_cmp_lt_u32 s30, 5
    s_cselect_b32 s10, {f2u(qs)}, 1.0
    v_mul_f32 v26, s10, v26
    v_and_b32 v2, 4, v1
    v_and_b32 v3, 8, v1
    v_and_b32 v5, 19, v1
    v_lshl_or_b32 v2, v2, 1, v5
    v_lshrrev_b32 v3, 1, v3
    v_or_b32 v2, v2, v3
    s_cselect_b64 vcc, -1, 0
    s_nop 1
    v_cndmask_b32 v2, v2, v1, vcc
    v_lshlrev_b32 v2, 3, v2
    v_lshl_add_u32 v2, v4, 14, v2
    v_lshlrev_b32 v5, 4, v4
    v_add_u32 v5, 0x20000, v5
    s_lshl_b32 s39, s30, 19
    s_lshl_b32 s11, s38, 8
    s_add_u32 s39, s39, s11
    """)
    T = 136
    for c in range(4):
        a(f"""
        s_add_u32 s10, s28, {c}
        s_and_b32 s10, s10, 3
        s_lshl_b32 s11, s10, 7
        v_add_u32 v6, s11, v5
        s_lshl_b32 s10, s10, 17
        s_add_u32 s40, s39, s10
        """)
        for g in range(4):
            a(f"ds_read_b128 {vr(T+16*(c&1)+4*g,4)}, v6 offset:{g*32}")
        for g in range(4):
            a(f"s_waitcnt lgkmcnt({3-g})")
            for h in range(2):
                r = ACC+16*c+4*g+2*h
                t = T+16*(c&1)+4*g+2*h
                a(f"v_pk_fma_f32 {vr(r,2)}, {vr(t,2)}, v[24:25], {vr(r,2)} op_sel_hi:[1,0,1]")
            for h in range(2):
                r = ACC+16*c+4*g+2*h
                a(f"v_pk_mul_f32 {vr(r,2)}, {vr(r,2)}, v[26:27] op_sel_hi:[1,0]")
            r = ACC+16*c+4*g
            a(f"""
            v_cvt_pk_bf16_f32 v{r}, v{r}, v{r+1}
            v_cvt_pk_bf16_f32 v{r+1}, v{r+2}, v{r+3}
            buffer_store_dwordx2 {vr(r,2)}, v2, s[24:27], s40 offen
            s_add_u32 s40, s40, 32768
            """)
    a("s_branch K1_fin")
    a("K1_epiV:")
    a(f"""
    v_lshlrev_b32 v2, 4, v1
    v_lshl_add_u32 v2, v4, 3, v2
    v_lshlrev_b32 v5, 4, v4
    s_lshl_b32 s11, s28, 8
    v_add_u32 v5, s11, v5
    v_add_u32 v5, 0x20000, v5
    v_lshlrev_b32 v6, 2, v1
    v_add_u32 v6, 0x20000, v6
    """)
    for g in range(4):
        a(f"ds_read_b128 {vr(T+4*g,4)}, v5 offset:{512+g*32}")
        a(f"ds_read_b128 {vr(T+16+4*g,4)}, v5 offset:{640+g*32}")
    a(f"""
    s_mul_i32 s39, s38, {4*L.VROW}
    s_sub_u32 s10, s30, 10
    s_lshl_b32 s10, s10, 11
    s_add_u32 s39, s39, s10
    s_add_u32 s39, s39, {L.VF}
    """)
    for c in range(4):
        a(f"""
        s_add_u32 s10, s28, {c}
        s_and_b32 s10, s10, 3
        s_lshl_b32 s11, s10, 7
        v_add_u32 v7, s11, v6
        ds_read_b32 v{24+2*(c&1)}, v7
        s_lshl_b32 s10, s10, 9
        s_add_u32 s40, s39, s10
        s_waitcnt lgkmcnt(0)
        """)
        cs = 24+2*(c&1)
        for g in range(4):
            for h in range(2):
                r = ACC+16*c+4*g+2*h
                a(f"v_pk_fma_f32 {vr(r,2)}, {vr(T+4*g+2*h,2)}, {vr(cs,2)}, {vr(r,2)} op_sel_hi:[1,0,1]")
            for h in range(2):
                r = ACC+16*c+4*g+2*h
                a(f"v_pk_mul_f32 {vr(r,2)}, {vr(r,2)}, {vr(T+16+4*g+2*h,2)}")
            r = ACC+16*c+4*g
            a(f"""
            v_cvt_pk_bf16_f32 v{r}, v{r}, v{r+1}
            v_cvt_pk_bf16_f32 v{r+1}, v{r+2}, v{r+3}
            buffer_store_dwordx2 {vr(r,2)}, v2, s[24:27], s40 offen
            s_add_u32 s40, s40, {L.VROW}
            """)
    a("K1_fin:")
    stamp(a, 5)
    if PROFILE: a("s_waitcnt vmcnt(0)")
    stamp(a, 6); stamp_real(a, 7)
    prof_store(a, 0, 8, 28)
    a("s_endpgm")

    a("K1_spare:")
    a(f"""
    s_cmp_ge_u32 s28, 4
    s_cbranch_scc1 K1_end
    s_cmp_lt_u32 s29, 8
    s_cselect_b32 s16, s12, s14
    s_cselect_b32 s17, s13, s15
    s_and_b32 s17, s17, 0xffff
    s_mov_b32 s18, 1966080
    s_mov_b32 s19, 0x00020000
    s_and_b32 s10, s29, 7
    s_mul_i32 s31, s10, 384
    v_and_b32 v1, 31, v0
    v_lshrrev_b32 v4, 5, v0
    s_lshl_b32 s10, s28, 1
    v_add_u32 v2, s10, v4
    v_mul_u32_u24 v2, 3072, v2
    v_lshl_add_u32 v2, v1, 4, v2
    v_add_u32 v2, s31, v2
    v_mov_b32 v3, 0x40000000
    v_cmp_gt_u32 vcc, 24, v1
    s_nop 1
    v_cndmask_b32 v2, v3, v2, vcc
    s_mov_b32 s37, 0x00003f80
    s_mov_b32 s38, 0x3f800000
    """)
    for r in range(8, 16):
        a(f"v_mov_b32 v{r}, 0")
    D = 20
    B = 32
    for i in range(D):
        a(f"""
        buffer_load_dwordx4 {vr(B+4*i,4)}, v2, s[16:19], 0 offen
        v_add_u32 v2, 24576, v2
        """)
    a.c("V ones rows (wave 0 only)")
    a(f"""
    s_cmp_lg_u32 s28, 0
    s_cbranch_scc1 K1_sp1
    v_lshrrev_b32 v5, 2, v0
    s_lshl_b32 s10, s29, 4
    v_add_u32 v5, s10, v5
    v_mul_u32_u24 v5, {L.VROW}, v5
    v_and_b32 v6, 3, v0
    v_lshl_add_u32 v5, v6, 4, v5
    v_mov_b32 v16, s36
    v_mov_b32 v17, s36
    v_mov_b32 v18, s36
    v_mov_b32 v19, s36
    s_mov_b32 s10, {L.VF+10240}
    buffer_store_dwordx4 v[16:19], v5, s[24:27], s10 offen
    s_waitcnt vmcnt(0)
    K1_sp1:
    s_mov_b32 s34, 0
    K1_sploop:
    """)
    for i in range(D):
        a(f"s_waitcnt vmcnt({D-1})")
        for d in range(4):
            a(f"v_dot2c_f32_bf16 v{8+2*d}, s37, v{B+4*i+d}")
            a(f"v_dot2c_f32_bf16 v{9+2*d}, s38, v{B+4*i+d}")
        a(f"""
        buffer_load_dwordx4 {vr(B+4*i,4)}, v2, s[16:19], 0 offen
        v_add_u32 v2, 24576, v2
        """)
    a(f"""
    s_add_u32 s34, s34, 1
    s_cmp_lt_u32 s34, 4
    s_cbranch_scc1 K1_sploop
    s_nop 3
    """)
    for r in range(8, 16):
        halfsum(a, r, 5)
    a(f"""
    v_lshlrev_b32 v5, 5, v1
    s_lshl_b32 s10, s28, 10
    v_add_u32 v5, s10, v5
    ds_write_b128 v5, v[8:11]
    ds_write_b128 v5, v[12:15] offset:16
    s_waitcnt lgkmcnt(0)
    s_barrier
    s_lshl_b32 s10, s28, 6
    v_add_u32 v6, s10, v0
    v_lshlrev_b32 v6, 2, v6
    ds_read_b32 v8, v6
    ds_read_b32 v9, v6 offset:1024
    ds_read_b32 v10, v6 offset:2048
    ds_read_b32 v11, v6 offset:3072
    s_waitcnt lgkmcnt(0)
    v_add_f32 v8, v8, v9
    v_add_f32 v10, v10, v11
    v_add_f32 v8, v8, v10
    s_mul_i32 s10, s29, 768
    s_add_u32 s10, s10, {L.CS}
    s_cmp_eq_u32 s28, 3
    s_cbranch_scc1 K1_fin
    buffer_store_dword v8, v6, s[24:27], s10 offen
    s_branch K1_fin
    K1_end:
    s_endpgm
    """)
    return dict(name=N, grid=256, block=512, lds=133120, nvgpr=200, accoff=200)
```

```python
from asmlib import *

def gen_k2(a):
    N = "attn_kernel"
    kernel_begin(a, N)
    a(f"""
    s_cmp_ge_u32 s2, 256
    s_cbranch_scc1 K2_end
    s_load_dwordx2 s[8:9], s[0:1], 72
    s_load_dwordx2 s[4:5], s[0:1], 16
    s_load_dwordx4 s[12:15], s[0:1], 32
    s_load_dwordx2 s[6:7], s[0:1], 48
    v_lshrrev_b32 v1, 6, v0
    v_and_b32 v0, 63, v0
    s_and_b32 s3, s2, 7
    v_readfirstlane_b32 s28, v1
    s_lshr_b32 s10, s2, 3
    s_lshr_b32 s29, s10, 3
    s_lshl_b32 s3, s3, 2
    s_add_u32 s29, s29, s3
    s_and_b32 s30, s10, 7
    s_waitcnt lgkmcnt(0)
    """)
    stamp_real(a, 0); stamp(a, 1)
    srd(a, 24, 8, L.WS_USED)
    a(f"""
    s_cmp_eq_u32 s28, 4
    s_cbranch_scc1 K2_helper
    """)
    QA1, QA2, QB1, QB2 = 8, 12, 16, 20
    NMA, NMB = 32, 48
    SA, SB = 64, 80
    PA, PB = 96, 104
    OA, OB = 112, 128
    RING = 144
    def K1r(b): return RING+16*b
    def K2r(b): return RING+16*b+4
    def V1r(b): return RING+16*b+8
    def V2r(b): return RING+16*b+12
    vKA, vKB, vKC, vV1, vV2 = 2, 3, 4, 5, 6
    MA, MB = 24, 25
    a(f"""
    v_and_b32 v1, 31, v0
    v_lshrrev_b32 v7, 5, v0
    v_lshlrev_b32 v{vKC}, 3, v1
    v_lshl_add_u32 v{vKA}, v7, 14, v{vKC}
    v_add_u32 v{vKB}, 0x8000, v{vKA}
    v_add_u32 v{vKC}, 0x10000, v{vKC}
    s_mul_i32 s31, s29, {5*16384}
    s_lshl_b32 s10, s30, 3
    s_lshl_b32 s11, s28, 1
    s_add_u32 s38, s10, s11
    s_lshl_b32 s10, s38, 8
    s_add_u32 s10, s10, s31
    buffer_load_dwordx2 {vr(QA1,2)}, v{vKA}, s[24:27], s10 offen
    buffer_load_dwordx2 {vr(QA1+2,2)}, v{vKB}, s[24:27], s10 offen
    buffer_load_dwordx2 {vr(QA2,2)}, v{vKC}, s[24:27], s10 offen
    buffer_load_dwordx2 {vr(QB1,2)}, v{vKA}, s[24:27], s10 offen offset:256
    buffer_load_dwordx2 {vr(QB1+2,2)}, v{vKB}, s[24:27], s10 offen offset:256
    buffer_load_dwordx2 {vr(QB2,2)}, v{vKC}, s[24:27], s10 offen offset:256
    s_add_u32 s31, s31, {L.KF}
    s_mul_i32 s10, s29, 320
    v_lshl_add_u32 v{vV1}, v1, 4, s10
    v_and_b32 v26, 3, v1
    v_lshlrev_b32 v26, 4, v26
    v_add_u32 v26, 10240, v26
    v_cmp_gt_u32 vcc, 20, v1
    v_mul_u32_u24 v27, {L.VROW}, v7
    s_nop 0
    v_cndmask_b32 v{vV1}, v26, v{vV1}, vcc
    v_add_u32 v{vV1}, v{vV1}, v27
    v_add_u32 v{vV2}, {2*L.VROW}, v{vV1}
    s_mov_b32 s34, 0
    s_mov_b32 s35, 0
    """)
    def loadK(b, soff, off):
        a(f"""
        buffer_load_dwordx2 {vr(K1r(b),2)}, v{vKA}, s[24:27], {soff} offen offset:{off}
        buffer_load_dwordx2 {vr(K1r(b)+2,2)}, v{vKB}, s[24:27], {soff} offen offset:{off}
        buffer_load_dwordx2 {vr(K2r(b),2)}, v{vKC}, s[24:27], {soff} offen offset:{off}
        """)
    def loadV(b, soff):
        a(f"""
        buffer_load_dwordx4 {vr(V1r(b),4)}, v{vV1}, s[24:27], {soff} offen
        buffer_load_dwordx4 {vr(V2r(b),4)}, v{vV2}, s[24:27], {soff} offen
        """)
    def maxtile():
        a(f"""
        v_mfma_f32_32x32x16_bf16 {vr(SA,16)}, {vr(K1r(3),4)}, {vr(QA1,4)}, 0
        v_mfma_f32_32x32x16_bf16 {vr(SB,16)}, {vr(K1r(3),4)}, {vr(QB1,4)}, 0
        v_mfma_f32_32x32x8_bf16 {vr(SA,16)}, {vr(K2r(3),2)}, {vr(QA2,2)}, {vr(SA,16)}
        v_mfma_f32_32x32x8_bf16 {vr(SB,16)}, {vr(K2r(3),2)}, {vr(QB2,2)}, {vr(SB,16)}
        s_nop 11
        """)
        for i in range(8):
            a(f"v_max3_f32 v{MA}, v{SA+2*i}, v{SA+2*i+1}, v{MA}")
        a("s_nop 3")
        for i in range(8):
            a(f"v_max3_f32 v{MB}, v{SB+2*i}, v{SB+2*i+1}, v{MB}")
    a("K2_restart:")
    a(f"""
    v_mov_b32 v{MA}, 0xff800000
    v_mov_b32 v{MB}, 0xff800000
    s_cmp_eq_u32 s34, 0
    s_cbranch_scc1 K2_max0
    K2_maxloop:
    s_lshl_b32 s10, s34, 8
    s_add_u32 s10, s10, s31
    """)
    loadK(3, "s10", 0)
    a("s_waitcnt vmcnt(0)")
    maxtile()
    a(f"""
    s_sub_u32 s34, s34, 1
    s_cmp_lg_u32 s34, 0
    s_cbranch_scc1 K2_maxloop
    K2_max0:
    s_mov_b32 s32, s31
    s_mov_b32 s33, {L.VF}
    """)
    loadK(3, "s32", 0)
    for j in range(3):
        loadV(j, "s33")
        a(f"s_add_u32 s33, s33, {4*L.VROW}")
        loadK(j, "s32", 256*(j+1))
    a(f"s_add_u32 s32, s32, 1024")
    for r in range(OA, OA+32):
        a(f"v_mov_b32 v{r}, 0")
    for r in range(V2r(3), V2r(3)+4):
        a(f"v_mov_b32 v{r}, 0")
    for r in range(PB+4, PB+8):
        a(f"v_mov_b32 v{r}, 0")
    a(f"""
    v_cmp_gt_u32 vcc, 32, v0
    s_waitcnt vmcnt(15)
    v_cndmask_b32 v{QA2}, 0, v{QA2}, vcc
    v_cndmask_b32 v{QA2+1}, 0, v{QA2+1}, vcc
    v_cndmask_b32 v{QB2}, 0, v{QB2}, vcc
    v_cndmask_b32 v{QB2+1}, 0, v{QB2+1}, vcc
    s_nop 1
    """)
    stamp(a, 2)
    maxtile()
    for m in (MA, MB):
        a(f"""
        v_mov_b32 v26, v{m}
        s_nop 1
        v_permlane32_swap_b32 v{m}, v26
        s_nop 1
        v_max_f32 v{m}, v{m}, v26
        """)
    for r in range(16):
        a(f"v_sub_f32 v{NMA+r}, 0, v{MA}")
    for r in range(16):
        a(f"v_sub_f32 v{NMB+r}, 0, v{MB}")
    a(f"""
    v_mfma_f32_32x32x16_bf16 {vr(SA,16)}, {vr(K1r(3),4)}, {vr(QA1,4)}, {vr(NMA,16)}
    v_mfma_f32_32x32x8_bf16 {vr(SA,16)}, {vr(K2r(3),2)}, {vr(QA2,2)}, {vr(SA,16)}
    s_mov_b32 s36, 0
    s_nop 15
    """)
    stamp(a, 3)
    a(".p2align 6")
    a("K2_loop:")
    def half(X, u):
        if X == 'A':
            S, P, O = SA, PA, OA
            SY, PY, OY, QY1, QY2, NM = SB, PB, OB, QB1, QB2, NMB
            kb = (u+3) % 4
            vyb = (u+3) % 4
        else:
            S, P, O = SB, PB, OB
            SY, PY, OY, QY1, QY2, NM = SA, PA, OA, QA1, QA2, NMA
            kb = u
            vyb = u
        M = [f"v_mfma_f32_32x32x16_bf16 {vr(SY,16)}, {vr(K1r(kb),4)}, {vr(QY1,4)}, {vr(NM,16)}",
             f"v_mfma_f32_32x32x8_bf16 {vr(SY,16)}, {vr(K2r(kb),2)}, {vr(QY2,2)}, {vr(SY,16)}",
             f"v_mfma_f32_32x32x16_bf16 {vr(OY,16)}, {vr(V2r(vyb),4)}, {vr(PY+4,4)}, {vr(OY,16)}",
             f"v_mfma_f32_32x32x16_bf16 {vr(O,16)}, {vr(V1r(u),4)}, {vr(P,4)}, {vr(O,16)}"]
        nb = (u+3) % 4
        for g in range(4):
            a(f"v_exp_f32 v{S+4*g}, v{S+4*g}")
            if X == 'A' and g == 3:
                a("s_waitcnt vmcnt(10)")
            if X == 'B' and g == 0:
                a(f"buffer_load_dwordx4 {vr(V1r(nb),4)}, v{vV1}, s[24:27], s33 offen")
            if X == 'B' and g == 1:
                a(f"buffer_load_dwordx2 {vr(K1r(nb),2)}, v{vKA}, s[24:27], s32 offen offset:{256*u}")
            if X == 'B' and g == 2:
                a(f"buffer_load_dwordx2 {vr(K2r(nb),2)}, v{vKC}, s[24:27], s32 offen offset:{256*u}")
            a(f"v_exp_f32 v{S+4*g+1}, v{S+4*g+1}")
            a(M[g])
            a(f"v_exp_f32 v{S+4*g+2}, v{S+4*g+2}")
            if X == 'B' and g == 0:
                a(f"buffer_load_dwordx4 {vr(V2r(nb),4)}, v{vV2}, s[24:27], s33 offen")
            if X == 'B' and g == 1:
                a(f"buffer_load_dwordx2 {vr(K1r(nb)+2,2)}, v{vKB}, s[24:27], s32 offen offset:{256*u}")
            if X == 'B' and g == 2:
                a(f"s_add_u32 s33, s33, {4*L.VROW}")
            if X == 'B' and g == 3 and u == 3:
                a("s_add_u32 s32, s32, 1024")
            a(f"v_exp_f32 v{S+4*g+3}, v{S+4*g+3}")
            if X == 'B' and g == 3 and u == 3:
                a("s_add_u32 s36, s36, 1")
            a(f"v_cvt_pk_bf16_f32 v{P+2*g}, v{S+4*g}, v{S+4*g+1}")
            if X == 'B' and g == 3 and u == 3:
                a("s_cmp_lt_u32 s36, 16")
            a(f"v_cvt_pk_bf16_f32 v{P+2*g+1}, v{S+4*g+2}, v{S+4*g+3}")
    n0 = len(a.lines)
    for u in range(4):
        half('A', u)
        half('B', u)
    if os.environ.get("K2_NOLOAD"):
        a.lines[n0:] = [l for l in a.lines[n0:] if "buffer_load" not in l and "s_waitcnt" not in l]
    if os.environ.get("K2_NOWAIT"):
        a.lines[n0:] = [l for l in a.lines[n0:] if "s_waitcnt" not in l]
    if os.environ.get("K2_NOV"):
        a.lines[n0:] = [l.replace("vmcnt(10)", "vmcnt(6)") for l in a.lines[n0:] if "buffer_load_dwordx4" not in l]
    a("s_cbranch_scc1 K2_loop")
    stamp(a, 4)
    a(f"""
    s_nop 1
    v_mfma_f32_32x32x16_bf16 {vr(OB,16)}, {vr(V2r(3),4)}, {vr(PB+4,4)}, {vr(OB,16)}
    s_nop 15
    s_mov_b64 s[40:41], 0
    s_movk_i32 s10, 0x207
    """)
    for O in (OA, OB):
        for r in range(13):
            a(f"""
            v_cmp_class_f32 vcc, v{O+r}, s10
            s_or_b64 s[40:41], s[40:41], vcc
            """)
    a(f"""
    s_cmp_eq_u64 s[40:41], 0
    s_cbranch_scc1 K2_out
    s_cmp_lg_u32 s35, 0
    s_cbranch_scc1 K2_out
    s_mov_b32 s35, 1
    s_mov_b32 s34, 63
    s_waitcnt vmcnt(0)
    s_branch K2_restart
    K2_out:
    """)
    a(f"""
    v_and_b32 v1, 31, v0
    v_lshrrev_b32 v7, 5, v0
    v_lshrrev_b32 v2, 4, v1
    v_mul_u32_u24 v2, 20480, v2
    v_and_b32 v3, 15, v1
    v_lshl_add_u32 v2, v3, 4, v2
    s_mul_i32 s10, s29, 5
    v_add_u32 v3, s10, v7
    s_mul_i32 s39, s38, 40960
    s_add_u32 s39, s39, {L.OF}
    v_rcp_f32 v26, v{OA+12}
    v_rcp_f32 v27, v{OB+12}
    """)
    for m in range(3):
        d = 4+m
        a(f"""
        v_add_u32 v28, {2*m}, v3
        v_lshrrev_b32 v29, 2, v28
        v_lshl_add_u32 v{d}, v29, 9, v2
        v_and_b32 v29, 1, v28
        v_lshl_add_u32 v{d}, v29, 8, v{d}
        v_and_b32 v29, 2, v28
        v_lshl_add_u32 v{d}, v29, 2, v{d}
        """)
    a(f"""
    v_mov_b32 v28, 0x7ffffff0
    v_cmp_gt_u32 vcc, 32, v0
    s_nop 1
    v_cndmask_b32 v6, v28, v6, vcc
    """)
    for O, rl, so in ((OA, 26, 0), (OB, 27, 40960)):
        for r in range(12):
            a(f"v_mul_f32 v{O+r}, v{O+r}, v{rl}")
        for i in range(6):
            a(f"v_cvt_pk_bf16_f32 v{O+i}, v{O+2*i}, v{O+2*i+1}")
        for m in range(3):
            a(f"buffer_store_dwordx2 {vr(O+2*m,2)}, v{4+m}, s[24:27], s39 offen")
        a(f"s_add_u32 s39, s39, 40960")
    a("K2_fin:")
    stamp(a, 5)
    if PROFILE: a("s_waitcnt vmcnt(0)")
    stamp(a, 6); stamp_real(a, 7)
    prof_store(a, 1, 8, 28)
    a("s_endpgm")

    a("K2_helper:")
    srd(a, 16, 12, 1966080)
    srd(a, 20, 14, 1966080)
    srd(a, 44, 4, 819200)
    srd(a, 48, 6, 1966080)
    a(f"""
    v_lshrrev_b32 v1, 3, v0
    v_and_b32 v2, 7, v0
    v_mul_u32_u24 v3, 3072, v1
    v_lshl_add_u32 v3, v2, 4, v3
    v_add_u32 v4, 24576, v3
    v_mul_u32_u24 v5, 1280, v1
    v_lshl_add_u32 v5, v2, 4, v5
    v_add_u32 v6, 10240, v5
    v_add_u32 v7, 20480, v5
    v_add_u32 v8, 30720, v5
    s_mov_b32 s31, s2
    s_mov_b32 s32, 0
    K2_h1:
    s_cmp_ge_u32 s31, 960
    s_cbranch_scc1 K2_h1d
    s_mul_i32 s10, s31, 2731
    s_lshr_b32 s10, s10, 16
    s_mul_i32 s11, s10, 24
    s_sub_u32 s11, s31, s11
    s_mul_i32 s10, s10, 49152
    s_lshl_b32 s11, s11, 7
    s_add_u32 s10, s10, s11
    s_mov_b32 m0, s32
    s_nop 0
    buffer_load_dwordx4 v3, s[16:19], s10 offen lds
    s_add_u32 m0, s32, 1024
    s_nop 0
    buffer_load_dwordx4 v4, s[16:19], s10 offen lds
    s_add_u32 m0, s32, 2048
    s_nop 0
    buffer_load_dwordx4 v3, s[20:23], s10 offen lds
    s_add_u32 m0, s32, 3072
    s_nop 0
    buffer_load_dwordx4 v4, s[20:23], s10 offen lds
    s_branch K2_h1n
    K2_h1d:
    s_cmp_ge_u32 s31, 1160
    s_cselect_b32 s33, 200, 0
    s_sub_u32 s33, s31, s33
    s_sub_u32 s33, s33, 960
    s_mul_i32 s10, s33, 6554
    s_lshr_b32 s10, s10, 16
    s_mul_i32 s11, s10, 10
    s_sub_u32 s11, s33, s11
    s_mul_i32 s10, s10, 40960
    s_lshl_b32 s11, s11, 7
    s_add_u32 s10, s10, s11
    s_cmp_ge_u32 s31, 1160
    s_cbranch_scc1 K2_h1w
    """)
    for i in range(4):
        a(f"""
        s_add_u32 m0, s32, {1024*i}
        s_nop 0
        buffer_load_dwordx4 v{5+i}, s[44:47], s10 offen lds
        """)
    a("""
    s_branch K2_h1n
    K2_h1w:
    """)
    for i in range(4):
        a(f"""
        s_add_u32 m0, s32, {1024*i}
        s_nop 0
        buffer_load_dwordx4 v{5+i}, s[48:51], s10 offen lds
        """)
    a(f"""
    K2_h1n:
    s_add_u32 s31, s31, 256
    s_add_u32 s32, s32, 4096
    s_cmp_lt_u32 s31, 1640
    s_cbranch_scc1 K2_h1
    """)
    a(f"""
    v_and_b32 v1, 15, v0
    v_lshrrev_b32 v2, 4, v0
    v_lshrrev_b32 v9, 2, v1
    v_and_b32 v10, 3, v1
    v_lshrrev_b32 v11, 1, v2
    v_and_b32 v12, 1, v2
    v_lshl_add_u32 v13, v11, 4, v9
    v_lshl_add_u32 v13, v12, 2, v13
    v_lshlrev_b32 v13, 7, v13
    v_lshl_add_u32 v13, v10, 3, v13
    v_lshl_add_u32 v14, v11, 3, v9
    v_lshlrev_b32 v14, 7, v14
    v_lshl_add_u32 v14, v12, 11, v14
    v_lshl_add_u32 v14, v10, 3, v14
    v_lshlrev_b32 v15, 4, v0
    s_mov_b32 s31, s2
    s_waitcnt vmcnt(0)
    K2_h2:
    s_cmp_ge_u32 s31, 960
    s_cbranch_scc1 K2_h2d
    """)
    for c in range(4):
        for j in range(2):
            a(f"ds_read_b64_tr_b16 {vr(16+4*c+2*j,2)}, v14 offset:{j*512+c*32}")
    a("""
    s_branch K2_h2n
    K2_h2d:
    """)
    for c in range(4):
        for j in range(2):
            a(f"ds_read_b64_tr_b16 {vr(16+4*c+2*j,2)}, v13 offset:{j*1024+c*32}")
    a(f"""
    K2_h2n:
    s_lshl_b32 s10, s31, 12
    s_add_u32 s10, s10, {L.WF}
    s_waitcnt lgkmcnt(0)
    """)
    for c in range(4):
        a(f"buffer_store_dwordx4 {vr(16+4*c,4)}, v15, s[24:27], s10 offen offset:{1024*c}")
    a(f"""
    v_add_u32 v13, 4096, v13
    v_add_u32 v14, 4096, v14
    s_add_u32 s31, s31, 256
    s_cmp_lt_u32 s31, 1640
    s_cbranch_scc1 K2_h2
    """)
    if PROFILE:
        stamp(a, 2); stamp(a, 3); stamp(a, 4)
        a("s_branch K2_fin")
    a("""
    K2_end:
    s_endpgm
    """)
    return dict(name=N, grid=256, block=320, lds=28672, nvgpr=208, accoff=208)
```

```python
from asmlib import *

def gemm80(a, N, P, kidx, KS, act_base, w_base, is_k3):
    NST = KS // 4
    NSLOT = min(NST, 7)
    kernel_begin(a, N)
    a(f"""
    s_cmp_ge_u32 s2, 256
    s_cbranch_scc1 {P}_end
    s_load_dwordx2 s[8:9], s[0:1], 72
    s_load_dwordx2 s[4:5], s[0:1], {0 if is_k3 else 56}
    v_lshrrev_b32 v1, 6, v0
    v_and_b32 v0, 63, v0
    s_and_b32 s3, s2, 7
    v_readfirstlane_b32 s28, v1
    s_lshr_b32 s10, s2, 3
    s_and_b32 s29, s10, 3
    s_lshl_b32 s3, s3, 2
    s_add_u32 s29, s29, s3
    s_lshr_b32 s30, s10, 2
    v_lshlrev_b32 v2, 4, v0
    s_waitcnt lgkmcnt(0)
    """)
    stamp_real(a, 0); stamp(a, 1)
    srd(a, 24, 8, L.WS_USED)
    srd(a, 16, 4, 2621440)
    a(f"""
    s_and_b32 s10, s29, 3
    s_lshl_b32 s10, s10, 1
    s_add_u32 s10, s10, s30
    s_mul_i32 s10, s10, {NST}
    s_lshr_b32 s44, s10, 3
    s_cmp_ge_u32 s44, {NST}
    s_cselect_b32 s10, {NST}, 0
    s_sub_u32 s44, s44, s10
    s_cmp_lt_u32 s28, 4
    s_cbranch_scc1 {P}_comp
    s_sub_u32 s28, s28, 4
    """)
    a(f"""
    s_mul_i32 s42, s30, 5120
    s_mul_i32 s10, s28, 40960
    s_add_u32 s42, s42, s10
    s_add_u32 s42, s42, {w_base}
    s_mul_i32 s33, s28, 5120
    """)
    def dma_stage(slot):
        a(f"""
        s_mul_i32 s31, s44, 163840
        s_add_u32 s31, s31, s42
        s_add_u32 m0, s33, {slot*20480}
        s_add_u32 s44, s44, 1
        buffer_load_dwordx4 v2, s[24:27], s31 offen lds
        buffer_load_dwordx4 v2, s[24:27], s31 offen offset:1024 lds
        buffer_load_dwordx4 v2, s[24:27], s31 offen offset:2048 lds
        buffer_load_dwordx4 v2, s[24:27], s31 offen offset:3072 lds
        s_add_u32 m0, s33, {slot*20480+4096}
        s_add_u32 s31, s31, 4096
        buffer_load_dwordx4 v2, s[24:27], s31 offen lds
        s_cmp_eq_u32 s44, {NST}
        s_cselect_b32 s44, 0, s44
        """)
    AHEAD = min(NST, NSLOT-1) if NST > NSLOT else NST
    for t in range(AHEAD):
        dma_stage(t % NSLOT)
    issued = AHEAD
    for st in range(NST):
        a(f"s_waitcnt vmcnt({5*(issued-1-st)})")
        a("s_barrier")
        if issued < NST:
            dma_stage(issued % NSLOT)
            issued += 1
    if PROFILE:
        a("s_add_u32 s28, s28, 4")
        stamp(a, 2); stamp(a, 3); stamp(a, 4)
        a(f"s_branch {P}_fin")
    a("s_endpgm")
    a(f"{P}_comp:")
    a(f"""
    s_lshl_b32 s38, s29, 2
    s_add_u32 s38, s38, s28
    s_mul_i32 s42, s38, {KS*1024}
    s_add_u32 s42, s42, {act_base}
    """)
    D = 6
    def act_stage(st):
        a(f"""
        s_lshl_b32 s31, s44, 12
        s_add_u32 s31, s31, s42
        s_add_u32 s44, s44, 1
        """)
        for i in range(4):
            a(f"buffer_load_dwordx4 {ar(16*(st%D)+4*i,4)}, v2, s[24:27], s31 offen offset:{1024*i}")
        a(f"""
        s_cmp_eq_u32 s44, {NST}
        s_cselect_b32 s44, 0, s44
        """)
    act_stage(0)
    RES = 8
    a(f"""
    v_and_b32 v3, 15, v0
    v_lshrrev_b32 v4, 4, v0
    s_lshl_b32 s10, s38, 4
    v_add_u32 v5, s10, v3
    v_mul_u32_u24 v5, 1280, v5
    v_lshl_add_u32 v5, v4, 3, v5
    s_mul_i32 s39, s30, 160
    v_lshrrev_b32 v6, 1, v4
    v_lshlrev_b32 v6, 9, v6
    v_and_b32 v7, 1, v4
    v_lshl_add_u32 v6, v7, 3, v6
    v_lshl_add_u32 v6, v3, 4, v6
    s_lshr_b32 s10, s38, 1
    s_mul_i32 s40, s10, 40960
    s_and_b32 s10, s38, 1
    s_lshl_b32 s10, s10, 8
    s_add_u32 s40, s40, s10
    s_mul_i32 s10, s30, 5120
    s_add_u32 s40, s40, s10
    s_add_u32 s40, s40, {L.HF}
    s_add_u32 s41, s40, 4096
    """)
    for ct in range(5):
        if is_k3:
            a(f"buffer_load_dwordx2 {vr(RES+2*ct,2)}, v5, s[16:19], s39 offen offset:{32*ct}")
        else:
            a(f"buffer_load_dwordx2 {vr(RES+2*ct,2)}, v6, s[24:27], {'s40' if ct < 4 else 's41'} offen offset:{1024*(ct%4)}")
    for st in range(1, min(NST, D-1)):
        act_stage(st)
    aissued = min(NST, D-1)
    ACC = 20
    for r in range(ACC, ACC+20):
        a(f"v_mov_b32 v{r}, 0")
    WB = [40, 60]
    nbase = (NSLOT*20480 + 61439) // 61440
    for b in range(1, nbase):
        a(f"v_add_u32 v{17+b}, {61440*b}, v2")
    def rd(gk):
        st, i = divmod(gk, 4)
        slot = st % NSLOT
        out = []
        for ct in range(5):
            off = slot*20480 + i*5120 + ct*1024
            b = (slot // 3)
            base = "v2" if b == 0 else f"v{17+b}"
            out.append(f"ds_read_b128 {vr(WB[gk&1]+4*ct,4)}, {base} offset:{off-61440*b}")
        return out
    stamp(a, 2)
    a("s_barrier")
    stamp(a, 3)
    if PROFILE: a("s_waitcnt lgkmcnt(0)")
    for x in rd(0): a(x)
    for gk in range(KS):
        st, i = divmod(gk, 4)
        nxt = rd(gk+1) if gk+1 < KS else []
        if i == 0:
            a(f"s_waitcnt vmcnt({4*(aissued-1-st) + (5 if st == 0 else 0)})")
            if aissued < NST:
                act_stage(aissued); aissued += 1
        if i == 3 and gk+1 < KS:
            a("s_waitcnt lgkmcnt(0)")
            a("s_barrier")
            for x in nxt: a(x)
            for ct in range(5):
                a(f"v_mfma_f32_16x16x32_bf16 {vr(ACC+4*ct,4)}, {vr(WB[gk&1]+4*ct,4)}, {ar(16*(st%D)+4*i,4)}, {vr(ACC+4*ct,4)}")
        else:
            for ct in range(5):
                a(f"s_waitcnt lgkmcnt({4 if nxt else 4-ct})")
                a(f"v_mfma_f32_16x16x32_bf16 {vr(ACC+4*ct,4)}, {vr(WB[gk&1]+4*ct,4)}, {ar(16*(st%D)+4*i,4)}, {vr(ACC+4*ct,4)}")
                if nxt: a(nxt[ct])
    stamp(a, 4)
    a("s_waitcnt vmcnt(0)")
    a("s_nop 7")
    if is_k3:
        a("""
        v_mov_b32 v40, 0
        v_mov_b32 v41, 0
        s_mov_b32 s36, 0x3f803f80
        """)
    for ct in range(5):
        r = RES+2*ct; c = ACC+4*ct
        a(f"""
        v_lshlrev_b32 v42, 16, v{r}
        v_and_b32 v43, 0xffff0000, v{r}
        v_lshlrev_b32 v44, 16, v{r+1}
        v_and_b32 v45, 0xffff0000, v{r+1}
        v_add_f32 v{c}, v{c}, v42
        v_add_f32 v{c+1}, v{c+1}, v43
        v_add_f32 v{c+2}, v{c+2}, v44
        v_add_f32 v{c+3}, v{c+3}, v45
        v_cvt_pk_bf16_f32 v{c}, v{c}, v{c+1}
        v_cvt_pk_bf16_f32 v{c+1}, v{c+2}, v{c+3}
        """)
        if is_k3:
            a(f"buffer_store_dwordx2 {vr(c,2)}, v6, s[24:27], {'s40' if ct < 4 else 's41'} offen offset:{1024*(ct%4)}")
            a(f"""
            v_dot2c_f32_bf16 v40, s36, v{c}
            v_dot2c_f32_bf16 v41, v{c}, v{c}
            v_dot2c_f32_bf16 v40, s36, v{c+1}
            v_dot2c_f32_bf16 v41, v{c+1}, v{c+1}
            """)
        else:
            a(f"buffer_store_dwordx2 {vr(c,2)}, v5, s[16:19], s39 offen offset:{32*ct}")
    if is_k3:
        a("s_nop 2")
        for x in (40, 41):
            a(f"""
            v_mov_b32 v42, v{x}
            s_nop 1
            v_permlane16_swap_b32 v{x}, v42
            s_nop 1
            v_add_f32 v{x}, v{x}, v42
            """)
            halfsum(a, x, 42)
        a(f"""
        v_lshlrev_b32 v3, 6, v3
        s_lshl_b32 s10, s38, 10
        s_lshl_b32 s11, s30, 3
        s_add_u32 s10, s10, s11
        s_add_u32 s10, s10, {L.ST}
        v_mov_b32 v42, 0x7ffffff0
        v_cmp_gt_u32 vcc, 16, v0
        s_nop 1
        v_cndmask_b32 v3, v42, v3, vcc
        buffer_store_dwordx2 v[40:41], v3, s[24:27], s10 offen
        """)
    a(f"{P}_fin:")
    stamp(a, 5)
    if PROFILE: a("s_waitcnt vmcnt(0)")
    stamp(a, 6); stamp_real(a, 7)
    prof_store(a, kidx, 8, 28)
    a(f"""
    {P}_end:
    s_endpgm
    """)
    acc = 80
    return dict(name=N, grid=256, block=512, lds=NSLOT*20480, nvgpr=acc+16*D, accoff=acc)

def gen_k3(a):
    return gemm80(a, "wo_kernel", "K3", 2, 20, L.OF, L.WF+960*4096, True)
def gen_k5(a):
    return gemm80(a, "down_kernel", "K5", 4, 48, L.AF, L.WF+1160*4096, False)
```

```python
from asmlib import *

def gen_k4(a):
    N = "gu_kernel"; P = "K4"
    NST = 10; NSLOT = 6; SS = 24576
    kernel_begin(a, N)
    a(f"""
    s_cmp_ge_u32 s2, 256
    s_cbranch_scc1 {P}_end
    s_load_dwordx2 s[8:9], s[0:1], 72
    v_lshrrev_b32 v1, 6, v0
    v_and_b32 v0, 63, v0
    s_and_b32 s3, s2, 7
    v_readfirstlane_b32 s28, v1
    s_lshr_b32 s10, s2, 3
    s_and_b32 s29, s10, 7
    s_lshr_b32 s11, s3, 2
    s_lshl_b32 s11, s11, 3
    s_add_u32 s29, s29, s11
    s_lshr_b32 s30, s10, 3
    s_and_b32 s11, s3, 3
    s_lshl_b32 s11, s11, 2
    s_add_u32 s30, s30, s11
    v_lshlrev_b32 v2, 4, v0
    s_waitcnt lgkmcnt(0)
    """)
    stamp_real(a, 0); stamp(a, 1)
    srd(a, 24, 8, L.WS_USED)
    a(f"""
    s_and_b32 s10, s30, 3
    s_lshl_b32 s10, s10, 1
    s_and_b32 s11, s29, 7
    s_add_u32 s10, s10, s11
    s_mul_i32 s10, s10, {NST}
    s_lshr_b32 s44, s10, 3
    s_cmp_ge_u32 s44, {NST}
    s_cselect_b32 s10, {NST}, 0
    s_sub_u32 s44, s44, s10
    s_cmp_lt_u32 s28, 4
    s_cbranch_scc1 {P}_comp
    s_sub_u32 s28, s28, 4
    s_mul_i32 s42, s30, 6144
    s_mul_i32 s10, s28, 98304
    s_add_u32 s42, s42, s10
    s_add_u32 s42, s42, {L.WF}
    s_mul_i32 s33, s28, 6144
    v_add_u32 v3, {6144-384}, v2
    v_cmp_gt_u32 vcc, 24, v0
    s_mul_i32 s39, s30, 384
    s_add_u32 s39, s39, {L.CS}
    v_cndmask_b32 v3, v3, v2, vcc
    s_mov_b32 m0, {NSLOT*SS}
    s_nop 0
    buffer_load_dwordx4 v3, s[24:27], s39 offen lds
    """)
    def dma_stage(slot):
        a(f"""
        s_mul_i32 s31, s44, 393216
        s_add_u32 s31, s31, s42
        s_add_u32 m0, s33, {slot*SS}
        s_add_u32 s44, s44, 1
        buffer_load_dwordx4 v2, s[24:27], s31 offen lds
        buffer_load_dwordx4 v2, s[24:27], s31 offen offset:1024 lds
        buffer_load_dwordx4 v2, s[24:27], s31 offen offset:2048 lds
        buffer_load_dwordx4 v2, s[24:27], s31 offen offset:3072 lds
        s_add_u32 m0, s33, {slot*SS+4096}
        s_add_u32 s31, s31, 4096
        buffer_load_dwordx4 v2, s[24:27], s31 offen lds
        buffer_load_dwordx4 v2, s[24:27], s31 offen offset:1024 lds
        s_cmp_eq_u32 s44, {NST}
        s_cselect_b32 s44, 0, s44
        """)
    AHEAD = NSLOT-1
    for t in range(AHEAD):
        dma_stage(t % NSLOT)
    issued = AHEAD
    for st in range(NST):
        a(f"s_waitcnt vmcnt({6*(issued-1-st)})")
        a("s_barrier")
        if issued < NST:
            dma_stage(issued % NSLOT)
            issued += 1
    if PROFILE:
        a("s_add_u32 s28, s28, 4")
        stamp(a, 2); stamp(a, 3); stamp(a, 4)
        a(f"s_branch {P}_fin")
    a("s_endpgm")
    a(f"{P}_comp:")
    a(f"""
    s_lshl_b32 s38, s29, 2
    s_add_u32 s38, s38, s28
    s_mul_i32 s42, s38, 40960
    s_add_u32 s42, s42, {L.HF}
    """)
    D = 4
    HB = 48
    def act_stage(st):
        a(f"""
        s_lshl_b32 s31, s44, 12
        s_add_u32 s31, s31, s42
        s_add_u32 s44, s44, 1
        """)
        for i in range(4):
            a(f"buffer_load_dwordx4 {ar(HB+16*(st%D)+4*i,4)}, v2, s[24:27], s31 offen offset:{1024*i}")
        a(f"""
        s_cmp_eq_u32 s44, {NST}
        s_cselect_b32 s44, 0, s44
        """)
    act_stage(0)
    a(f"""
    v_and_b32 v3, 31, v0
    v_lshrrev_b32 v4, 5, v0
    v_lshlrev_b32 v5, 6, v3
    v_lshl_add_u32 v5, v4, 5, v5
    s_lshl_b32 s10, s38, 11
    s_add_u32 s10, s10, {L.ST}
    buffer_load_dwordx4 v[8:11], v5, s[24:27], s10 offen
    buffer_load_dwordx4 v[12:15], v5, s[24:27], s10 offen offset:16
    """)
    for st in range(1, D-1):
        act_stage(st)
    aissued = D-1
    ACC = 32
    for r in range(ACC, ACC+96):
        a(f"v_mov_b32 v{r}, 0")
    for b in range(1, 3):
        a(f"v_add_u32 v{5+b}, {49152*b}, v2")
    def rd(gk):
        st, i = divmod(gk, 4)
        slot = st % NSLOT
        out = []
        for ct in range(6):
            off = slot*SS + i*6144 + ct*1024
            b = slot // 2
            base = "v2" if b == 0 else f"v{5+b}"
            out.append(f"ds_read_b128 {ar(24*(gk&1)+4*ct,4)}, {base} offset:{off-49152*b}")
        return out
    stamp(a, 2)
    a("s_barrier")
    stamp(a, 3)
    if PROFILE: a("s_waitcnt lgkmcnt(0)")
    for x in rd(0): a(x)
    KS = 40
    for gk in range(KS):
        st, i = divmod(gk, 4)
        nxt = rd(gk+1) if gk+1 < KS else []
        def mf(ct):
            a(f"v_mfma_f32_32x32x16_bf16 {vr(ACC+16*ct,16)}, {ar(24*(gk&1)+4*ct,4)}, {ar(HB+16*(st%D)+4*i,4)}, {vr(ACC+16*ct,16)}")
        if i == 0:
            a(f"s_waitcnt vmcnt({4*(aissued-1-st) + (2 if st == 0 else 0)})")
        if i == 3 and gk+1 < KS:
            a("s_waitcnt lgkmcnt(0)")
            a("s_barrier")
            for ct in range(6):
                mf(ct); a(nxt[ct])
        else:
            for ct in range(6):
                a(f"s_waitcnt lgkmcnt({5 if nxt else 5-ct})")
                mf(ct)
                if nxt: a(nxt[ct])
        if i == 0 and aissued < NST:
            act_stage(aissued); aissued += 1
    stamp(a, 4)
    CSB = 128
    a(f"""
    v_lshlrev_b32 v5, 4, v4
    v_add_u32 v5, {NSLOT*SS}, v5
    """)
    def cs_load(ct):
        b = CSB
        a(f"""
        ds_read_b128 {vr(b,4)}, v5 offset:{64*ct}
        ds_read_b128 {vr(b+4,4)}, v5 offset:{64*ct+32}
        ds_read_b128 {vr(b+8,4)}, v5 offset:{384+64*ct}
        ds_read_b128 {vr(b+12,4)}, v5 offset:{384+64*ct+32}
        """)
    cs_load(0)
    c_ = -2.0 * 0.7978845608028654 * 1.4426950408889634
    a(f"""
    v_add_f32 v8, v8, v10
    v_add_f32 v9, v9, v11
    v_add_f32 v12, v12, v14
    v_add_f32 v13, v13, v15
    v_add_f32 v8, v8, v12
    v_add_f32 v9, v9, v13
    """)
    halfsum(a, 8, 10); halfsum(a, 9, 10)
    a(f"""
    v_mul_f32 v8, {f2u(-1/640)}, v8
    v_mul_f32 v9, {f2u(1/640)}, v9
    v_fma_f32 v9, -v8, v8, v9
    v_max_f32 v9, 0, v9
    v_add_f32 v10, {f2u(1e-5)}, v9
    v_rsq_f32 v12, v10
    s_nop 0
    v_mul_f32 v14, v12, v12
    v_mul_f32 v12, {f2u(c_)}, v12
    v_mul_f32 v14, v14, v12
    v_mul_f32 v14, {f2u(0.044715)}, v14
    """)
    a(f"""
    v_lshrrev_b32 v16, 4, v3
    v_mul_u32_u24 v16, 49152, v16
    v_and_b32 v17, 15, v3
    v_lshl_add_u32 v16, v17, 4, v16
    v_lshl_add_u32 v16, v4, 8, v16
    s_mul_i32 s41, s38, 98304
    s_mul_i32 s10, s30, 3072
    s_add_u32 s41, s41, s10
    s_add_u32 s41, s41, {L.AF}
    """)
    T = 20
    for ct in range(6):
        cb = CSB
        c = ACC+16*ct
        a("s_waitcnt lgkmcnt(0)")
        for h in range(8):
            a(f"v_pk_fma_f32 {vr(c+2*h,2)}, {vr(cb+2*h,2)}, v[8:9], {vr(c+2*h,2)} op_sel_hi:[1,0,1]")
        if ct+1 < 6:
            cs_load(ct+1)
        for h in range(4):
            a(f"v_pk_mul_f32 {vr(T+2*h,2)}, {vr(c+2*h,2)}, {vr(c+2*h,2)}")
        for h in range(4):
            a(f"v_pk_fma_f32 {vr(T+2*h,2)}, {vr(T+2*h,2)}, v[14:15], v[12:13] op_sel_hi:[1,0,0]")
        for h in range(4):
            a(f"v_pk_mul_f32 {vr(T+2*h,2)}, {vr(T+2*h,2)}, {vr(c+2*h,2)}")
        for r in range(8):
            a(f"v_exp_f32 v{T+r}, v{T+r}")
        for h in range(4):
            a(f"v_pk_mul_f32 {vr(c+2*h,2)}, {vr(c+2*h,2)}, {vr(c+8+2*h,2)}")
        for h in range(4):
            a(f"v_pk_fma_f32 {vr(T+2*h,2)}, {vr(T+2*h,2)}, v[10:11], v[10:11] op_sel_hi:[1,0,0]")
        for r in range(8):
            a(f"v_rcp_f32 v{T+r}, v{T+r}")
        a("s_nop 0")
        for h in range(4):
            a(f"v_pk_mul_f32 {vr(c+2*h,2)}, {vr(c+2*h,2)}, {vr(T+2*h,2)}")
        for h in range(4):
            a(f"v_cvt_pk_bf16_f32 v{c+h}, v{c+2*h}, v{c+2*h+1}")
        a(f"buffer_store_dwordx4 {vr(c,4)}, v16, s[24:27], s41 offen offset:{512*ct}")
    a(f"{P}_fin:")
    stamp(a, 5)
    if PROFILE: a("s_waitcnt vmcnt(0)")
    stamp(a, 6); stamp_real(a, 7)
    prof_store(a, 3, 8, 28)
    a(f"""
    {P}_end:
    s_endpgm
    """)
    acc = 144
    return dict(name=N, grid=256, block=512, lds=NSLOT*SS+1024, nvgpr=256, accoff=acc)
```

```python
import sys
from asmlib import *
import k1
mods = [k1.gen_k1]
try:
    import k2; mods.append(k2.gen_k2)
    import k3; mods.append(k3.gen_k3)
    import k4; mods.append(k4.gen_k4)
    mods.append(k3.gen_k5)
except ImportError as e:
    print("partial:", e, file=sys.stderr)
hdr = open("sequential_preLN__softmax_full_mha__geglu_ffn__prompt.s.ref").read().split("\n")
top = [l for l in hdr if l.startswith(";") and "@launch" not in l and "Override launch" not in l and "grid=ceil" not in l]
a = A()
infos = []
for m in mods:
    infos.append(m(a))
out = "\n".join(top) + "\n"
for i in infos:
    out += f"; @launch kernel={i['name']} grid=({i['grid']},1,1) block=({i['block']},1,1) lds={i['lds']}\n"
out += '.amdgcn_target "amdgcn-amd-amdhsa--gfx950"\n.text\n'
out += a.text()
out += '.section .rodata,"a"\n'
for i in infos:
    out += ".p2align 6\n" + kd(i['name'], i['nvgpr'], i['accoff'])
dst = sys.argv[1] if len(sys.argv) > 1 else "sequential_preLN__softmax_full_mha__geglu_ffn__prompt.s"
open(dst, "w").write(out)
print("wrote", dst, len(out))
```
